```python
import torch

def _softmax(x, axis=-1):
    return torch.softmax(x, dim=axis)
def _gelu(x):
    return torch.nn.functional.gelu(x, approximate="tanh")
def _silu(x):
    return torch.nn.functional.silu(x)
def _sigmoid(x):
    return torch.sigmoid(x)
def _layernorm(x, axis=-1, eps=1e-5):
    m = x.mean(dim=axis, keepdim=True)
    v = x.var(dim=axis, keepdim=True, unbiased=False)
    return (x - m) / torch.sqrt(v + eps)
def _scatter_add(tgt, idx, src, axis=0):
    return tgt.clone().index_add_(axis, idx, src)
def _segment_sum(src, seg, n):
    out = torch.zeros((n,) + src.shape[1:], dtype=src.dtype)
    return out.index_add_(0, seg, src)
def _pad(x, pw):
    flat = tuple(v for pair in reversed(pw) for v in pair)
    return torch.nn.functional.pad(x, flat)

kernel_name = 'gated_mix__softmax_full_mha__dense_activation_silu__prompt'

def setup_inputs():

    _w = (lambda a: (lambda t: t.to(torch.bfloat16) if t.is_floating_point() else t)(torch.as_tensor(a)))
    def _A_setup():
        B, S, D = 1, 2048, 640
        return {
            "x": _w((lambda *s: torch.randn(*s, dtype=torch.bfloat16) * 0.1)(B, S, D)),
            "wqkv": _w((lambda *s: torch.randn(*s, dtype=torch.bfloat16) * 0.4)(D, 3 * D)),
            "wo": _w((lambda *s: torch.randn(*s, dtype=torch.bfloat16) * 0.2)(D, D)),
        }
    _A_in = _A_setup()

    def _B_setup():
        B, S, D, F = 1, 2048, 640, 1536
        return {
            "x": _w((lambda *s: torch.randn(*s, dtype=torch.bfloat16) * 0.1)(B, S, D)),
            "w1": _w((lambda *s: torch.randn(*s, dtype=torch.bfloat16) * 3.2)(D, F) * (D ** -0.5)),
            "w2": _w((lambda *s: torch.randn(*s, dtype=torch.bfloat16) * 3.2)(F, D) * (F ** -0.5)),
        }
    _B_in = _B_setup()

    return {
        "A_x": _A_in["x"],
        "A_wqkv": _A_in["wqkv"],
        "A_wo": _A_in["wo"],
        "B_x": _B_in["x"],
        "B_w1": _B_in["w1"],
        "B_w2": _B_in["w2"],
        "gate_w": _w((lambda *s: torch.randn(*s, dtype=torch.bfloat16) * 0.1)(640) * 16.0),
    }

def reference(A_x, A_wqkv, A_wo, B_x, B_w1, B_w2, gate_w):
    def _A_ref(x, wqkv, wo):
        B, S, D = x.shape
        H = 32; Dh = D // H
        qkv = (lambda x, *d: x.permute(*d))((x @ wqkv).reshape(B, S, 3, H, Dh), 2, 0, 3, 1, 4)
        q, k, v = qkv[0], qkv[1], qkv[2]
        scale = Dh ** -0.5
        scores = torch.einsum("bhqd,bhkd->bhqk", q, k) * scale
        p = _softmax(scores, axis=-1)
        o = torch.einsum("bhqk,bhkd->bhqd", p, v)
        return (lambda x, *d: x.permute(*d))(o, 0, 2, 1, 3).reshape(B, S, D) @ wo

    def _B_ref(x, w1, w2):
        h = torch.einsum("bsd,df->bsf", x, w1)
        h = _silu(h)
        out = torch.einsum("bsf,fd->bsd", h, w2)
        return out

    x = A_x
    g = _sigmoid((x * gate_w).sum(-1, keepdims=True))
    a = _A_ref(x, A_wqkv, A_wo)
    b = _B_ref(x, B_w1, B_w2)
    return g * a + (1 - g) * b
```

```python
WS_QF = 0x0
WS_KV = 0x300000
WS_HF = 0x900000
WS_OF = 0x1000000
WS_G = 0x1300000
WS_W2F = 0x1400000
WS_WOF = 0x1600000
WS_BB = 0x1700000
WS_CNT = 0x1a00000
QF_TILE = 1280
QF_HEAD = 64 * QF_TILE
KV_TILE = 2624
KV_HEAD = 64 * KV_TILE
OOB = 0x40000000


class Asm:
    def __init__(self):
        self.lines = []

    def __call__(self, s):
        for ln in s.strip("\n").split("\n"):
            ln = ln.strip()
            if ln:
                self.lines.append(("" if ln.endswith(":") else "    ") + ln)

    def label(self, name):
        self.lines.append(name + ":")

    def text(self):
        return "\n".join(self.lines) + "\n"


def vr(base, n=1):
    return f"v{base}" if n == 1 else f"v[{base}:{base + n - 1}]"


def ar(base, n=1):
    return f"a{base}" if n == 1 else f"a[{base}:{base + n - 1}]"


def sr(base, n=1):
    return f"s{base}" if n == 1 else f"s[{base}:{base + n - 1}]"


class VmTrack:
    def __init__(self, asm):
        self.asm = asm
        self.q = []

    def issue(self, tag, n=1):
        self.q += [tag] * n

    def wait(self, tags):
        if not isinstance(tags, (list, tuple, set)):
            tags = [tags]
        last = -1
        for i, t in enumerate(self.q):
            if t in tags:
                last = i
        if last < 0:
            return
        n = len(self.q) - 1 - last
        assert n <= 63
        self.asm(f"s_waitcnt vmcnt({n})")
        self.q = self.q[last + 1:]


def kernel_head(name):
    return f".globl {name}\n.p2align 8\n.type {name},@function\n{name}:\n"


def kernel_desc(name, vgpr, accum):
    return f""".p2align 6
.amdhsa_kernel {name}
  .amdhsa_next_free_vgpr {vgpr}
  .amdhsa_next_free_sgpr 102
  .amdhsa_accum_offset {accum}
  .amdhsa_group_segment_fixed_size 0
  .amdhsa_kernarg_size 80
  .amdhsa_user_sgpr_count 2
  .amdhsa_user_sgpr_kernarg_segment_ptr 1
  .amdhsa_system_sgpr_workgroup_id_x 1
.end_amdhsa_kernel
"""


def f32bits(x):
    import struct
    return struct.unpack("<I", struct.pack("<f", x))[0]


def check_div(mul, shift, d, n):
    for t in range(n):
        assert (t * mul) >> shift == t // d, (t, mul, shift, d)


import os
STAMP = bool(int(os.environ.get("STAMP", "0")))
WS_STAMP = 0x2000000
NSTAMP = 8


def stamp(a, i):
    if STAMP:
        a(f"s_memrealtime s[{80 + 2 * i}:{81 + 2 * i}]")


def stamp_begin(a):
    if STAMP:
        for i in range(1, NSTAMP):
            a(f"s_mov_b32 s{80 + 2 * i}, 0")
        a("s_memrealtime s[80:81]")
        a("s_memtime s[96:97]")


def stamp_end(a, kidx, srd, wave_sgpr="s3"):
    if not STAMP:
        return
    a(f"""
    s_memrealtime s[94:95]
    s_memtime s[98:99]
    s_lshl_b32 s100, s2, 4
    s_add_u32 s100, s100, {wave_sgpr}
    s_lshl_b32 s100, s100, 6
    s_add_u32 s100, s100, {WS_STAMP + kidx * 0x40000:#x}
    s_waitcnt lgkmcnt(0)
    v_mov_b32 v0, 0
    """)
    for i in range(NSTAMP):
        a(f"v_mov_b32 v{4 + i}, s{80 + 2 * i}")
    a("v_mov_b32 v12, s96")
    a("v_mov_b32 v13, s98")
    a("v_mov_b32 v14, 0")
    a("v_mov_b32 v15, 0")
    for i in range(3):
        a(f"buffer_store_dwordx4 v[{4 + 4 * i}:{7 + 4 * i}], v0, s[{srd}:{srd + 3}], s100 offen offset:{16 * i}")


NST2 = 12


def st2(a, i):
    if STAMP:
        a(f"s_memrealtime s[{72 + 2 * i}:{73 + 2 * i}]")


def st2_begin(a):
    if STAMP:
        for i in range(1, NST2):
            a(f"s_mov_b32 s{72 + 2 * i}, 0")
        a("s_memrealtime s[72:73]")
        a("s_memtime s[96:97]")


def st2_end(a, srd):
    if not STAMP:
        return
    a(f"""
    s_memrealtime s[94:95]
    s_memtime s[98:99]
    s_lshl_b32 s100, s2, 4
    s_add_u32 s100, s100, s3
    s_lshl_b32 s100, s100, 6
    s_add_u32 s100, s100, {WS_STAMP:#x}
    s_waitcnt lgkmcnt(0)
    v_mov_b32 v0, 0
    """)
    for i in range(NST2):
        a(f"v_mov_b32 v{4 + i}, s{72 + 2 * i}")
    a("v_mov_b32 v16, s96")
    a("v_mov_b32 v17, s98")
    a("v_mov_b32 v18, 0")
    a("v_mov_b32 v19, 0")
    for i in range(4):
        a(f"buffer_store_dwordx4 v[{4 + 4 * i}:{7 + 4 * i}], v0, s[{srd}:{srd + 3}], s100 offen offset:{16 * i}")
```

```python
import sys, importlib
sys.path.insert(0, "dev")
from common import *

HEAD = """; gated mix of full softmax attention and a SiLU MLP, S=2048 D=640 H=32 Dh=20 F=1536
"""


def generate(mods, path):
    ks = [importlib.import_module(m).build() for m in mods]
    out = HEAD
    for k in ks:
        out += f"; @launch kernel={k['name']} grid=({k['grid']},1,1) block=({k['block']},1,1) lds={k['lds']}\n"
    out += '.amdgcn_target "amdgcn-amd-amdhsa--gfx950"\n.text\n'
    for k in ks:
        out += kernel_head(k["name"]) + k["text"]
    out += '.section .rodata,"a"\n'
    for k in ks:
        out += kernel_desc(k["name"], k["vgpr"], k["accum"])
    open(path, "w").write(out)


if __name__ == "__main__":
    mods = sys.argv[2].split(",") if len(sys.argv) > 2 else os.environ.get("MODS", "k1,k2f").split(",")
    path = sys.argv[1] if len(sys.argv) > 1 else "gated_mix__softmax_full_mha__dense_activation_silu__prompt.s"
    generate(mods, path)
```

```python
WS_QF = 0x0
WS_KV = 0x300000
WS_HF = 0x900000
WS_OF = 0x1000000
WS_G = 0x1300000
WS_W2F = 0x1400000
WS_WOF = 0x1600000
WS_BB = 0x1700000
WS_CNT = 0x1a00000
QF_TILE = 1280
QF_HEAD = 64 * QF_TILE
KV_TILE = 2624
KV_HEAD = 64 * KV_TILE
OOB = 0x40000000


class Asm:
    def __init__(self):
        self.lines = []

    def __call__(self, s):
        for ln in s.strip("\n").split("\n"):
            ln = ln.strip()
            if ln:
                self.lines.append(("" if ln.endswith(":") else "    ") + ln)

    def label(self, name):
        self.lines.append(name + ":")

    def text(self):
        return "\n".join(self.lines) + "\n"


def vr(base, n=1):
    return f"v{base}" if n == 1 else f"v[{base}:{base + n - 1}]"


def ar(base, n=1):
    return f"a{base}" if n == 1 else f"a[{base}:{base + n - 1}]"


def sr(base, n=1):
    return f"s{base}" if n == 1 else f"s[{base}:{base + n - 1}]"


class VmTrack:
    def __init__(self, asm):
        self.asm = asm
        self.q = []

    def issue(self, tag, n=1):
        self.q += [tag] * n

    def wait(self, tags):
        if not isinstance(tags, (list, tuple, set)):
            tags = [tags]
        last = -1
        for i, t in enumerate(self.q):
            if t in tags:
                last = i
        if last < 0:
            return
        n = len(self.q) - 1 - last
        assert n <= 63
        self.asm(f"s_waitcnt vmcnt({n})")
        self.q = self.q[last + 1:]


def kernel_head(name):
    return f".globl {name}\n.p2align 8\n.type {name},@function\n{name}:\n"


def kernel_desc(name, vgpr, accum):
    return f""".p2align 6
.amdhsa_kernel {name}
  .amdhsa_next_free_vgpr {vgpr}
  .amdhsa_next_free_sgpr 102
  .amdhsa_accum_offset {accum}
  .amdhsa_group_segment_fixed_size 0
  .amdhsa_kernarg_size 80
  .amdhsa_user_sgpr_count 2
  .amdhsa_user_sgpr_kernarg_segment_ptr 1
  .amdhsa_system_sgpr_workgroup_id_x 1
.end_amdhsa_kernel
"""


def f32bits(x):
    import struct
    return struct.unpack("<I", struct.pack("<f", x))[0]


def check_div(mul, shift, d, n):
    for t in range(n):
        assert (t * mul) >> shift == t // d, (t, mul, shift, d)


import os
STAMP = bool(int(os.environ.get("STAMP", "0")))
WS_STAMP = 0x2000000
NSTAMP = 8


def stamp(a, i):
    if STAMP:
        a(f"s_memrealtime s[{80 + 2 * i}:{81 + 2 * i}]")


def stamp_begin(a):
    if STAMP:
        for i in range(1, NSTAMP):
            a(f"s_mov_b32 s{80 + 2 * i}, 0")
        a("s_memrealtime s[80:81]")
        a("s_memtime s[96:97]")


def stamp_end(a, kidx, srd, wave_sgpr="s3"):
    if not STAMP:
        return
    a(f"""
    s_memrealtime s[94:95]
    s_memtime s[98:99]
    s_lshl_b32 s100, s2, 4
    s_add_u32 s100, s100, {wave_sgpr}
    s_lshl_b32 s100, s100, 6
    s_add_u32 s100, s100, {WS_STAMP + kidx * 0x40000:#x}
    s_waitcnt lgkmcnt(0)
    v_mov_b32 v0, 0
    """)
    for i in range(NSTAMP):
        a(f"v_mov_b32 v{4 + i}, s{80 + 2 * i}")
    a("v_mov_b32 v12, s96")
    a("v_mov_b32 v13, s98")
    a("v_mov_b32 v14, 0")
    a("v_mov_b32 v15, 0")
    for i in range(3):
        a(f"buffer_store_dwordx4 v[{4 + 4 * i}:{7 + 4 * i}], v0, s[{srd}:{srd + 3}], s100 offen offset:{16 * i}")


NST2 = 12


def st2(a, i):
    if STAMP:
        a(f"s_memrealtime s[{72 + 2 * i}:{73 + 2 * i}]")


def st2_begin(a):
    if STAMP:
        for i in range(1, NST2):
            a(f"s_mov_b32 s{72 + 2 * i}, 0")
        a("s_memrealtime s[72:73]")
        a("s_memtime s[96:97]")


STAMPD = bool(int(os.environ.get("STAMPD", "0")))


def st2_end(a, srd, sd=None):
    if not STAMP:
        return
    if STAMPD:
        a("""
        s_memrealtime s[94:95]
        s_waitcnt lgkmcnt(0)
        s_not_b32 s72, s72
        s_cmp_eq_u32 s3, 0
        s_cselect_b32 s100, 1, 11
        v_mov_b32 v4, 0
        """)
        for i in range(NST2):
            a(f"v_writelane_b32 v4, s{72 + 2 * i}, {i}")
        a(f"""
        v_lshlrev_b32 v5, 2, v0
        s_mov_b32 exec_lo, 0x801
        s_cmov_b32 exec_lo, 0xfff
        s_mov_b32 exec_hi, 0
        buffer_atomic_umax v4, v5, s[{sd}:{sd + 3}], 0 offen offset:4 sc1
        """)
        return
    a(f"""
    s_memrealtime s[94:95]
    s_memtime s[98:99]
    s_lshl_b32 s100, s2, 4
    s_add_u32 s100, s100, s3
    s_lshl_b32 s100, s100, 6
    s_add_u32 s100, s100, {WS_STAMP:#x}
    s_waitcnt lgkmcnt(0)
    v_mov_b32 v0, 0
    """)
    for i in range(NST2):
        a(f"v_mov_b32 v{4 + i}, s{72 + 2 * i}")
    a("v_mov_b32 v16, s96")
    a("v_mov_b32 v17, s98")
    a("v_mov_b32 v18, 0")
    a("v_mov_b32 v19, 0")
    for i in range(4):
        a(f"buffer_store_dwordx4 v[{4 + 4 * i}:{7 + 4 * i}], v0, s[{srd}:{srd + 3}], s100 offen offset:{16 * i}")
```

```python
WS_QF = 0x0
WS_KV = 0x300000
WS_HF = 0x900000
WS_OF = 0x1000000
WS_G = 0x1300000
WS_W2F = 0x1400000
WS_WOF = 0x1600000
WS_BB = 0x1700000
WS_CNT = 0x1a00000
QF_TILE = 1280
QF_HEAD = 64 * QF_TILE
KV_TILE = 2624
KV_HEAD = 64 * KV_TILE
OOB = 0x40000000


class Asm:
    def __init__(self):
        self.lines = []

    def __call__(self, s):
        for ln in s.strip("\n").split("\n"):
            ln = ln.strip()
            if ln:
                self.lines.append(("" if ln.endswith(":") else "    ") + ln)

    def label(self, name):
        self.lines.append(name + ":")

    def text(self):
        return "\n".join(self.lines) + "\n"


def vr(base, n=1):
    return f"v{base}" if n == 1 else f"v[{base}:{base + n - 1}]"


def ar(base, n=1):
    return f"a{base}" if n == 1 else f"a[{base}:{base + n - 1}]"


def sr(base, n=1):
    return f"s{base}" if n == 1 else f"s[{base}:{base + n - 1}]"


class VmTrack:
    def __init__(self, asm):
        self.asm = asm
        self.q = []

    def issue(self, tag, n=1):
        self.q += [tag] * n

    def wait(self, tags):
        if not isinstance(tags, (list, tuple, set)):
            tags = [tags]
        last = -1
        for i, t in enumerate(self.q):
            if t in tags:
                last = i
        if last < 0:
            return
        n = len(self.q) - 1 - last
        assert n <= 63
        self.asm(f"s_waitcnt vmcnt({n})")
        self.q = self.q[last + 1:]


def kernel_head(name):
    return f".globl {name}\n.p2align 8\n.type {name},@function\n{name}:\n"


def kernel_desc(name, vgpr, accum):
    return f""".p2align 6
.amdhsa_kernel {name}
  .amdhsa_next_free_vgpr {vgpr}
  .amdhsa_next_free_sgpr 102
  .amdhsa_accum_offset {accum}
  .amdhsa_group_segment_fixed_size 0
  .amdhsa_kernarg_size 80
  .amdhsa_user_sgpr_count 2
  .amdhsa_user_sgpr_kernarg_segment_ptr 1
  .amdhsa_system_sgpr_workgroup_id_x 1
.end_amdhsa_kernel
"""


def f32bits(x):
    import struct
    return struct.unpack("<I", struct.pack("<f", x))[0]


def check_div(mul, shift, d, n):
    for t in range(n):
        assert (t * mul) >> shift == t // d, (t, mul, shift, d)


import os
STAMP = bool(int(os.environ.get("STAMP", "0")))
WS_STAMP = 0x2000000
NSTAMP = 8


def stamp(a, i):
    if STAMP:
        a(f"s_memrealtime s[{80 + 2 * i}:{81 + 2 * i}]")


def stamp_begin(a):
    if STAMP:
        for i in range(1, NSTAMP):
            a(f"s_mov_b32 s{80 + 2 * i}, 0")
        a("s_memrealtime s[80:81]")
        a("s_memtime s[96:97]")


def stamp_end(a, kidx, srd, wave_sgpr="s3"):
    if not STAMP:
        return
    a(f"""
    s_memrealtime s[94:95]
    s_memtime s[98:99]
    s_lshl_b32 s100, s2, 4
    s_add_u32 s100, s100, {wave_sgpr}
    s_lshl_b32 s100, s100, 6
    s_add_u32 s100, s100, {WS_STAMP + kidx * 0x40000:#x}
    s_waitcnt lgkmcnt(0)
    v_mov_b32 v0, 0
    """)
    for i in range(NSTAMP):
        a(f"v_mov_b32 v{4 + i}, s{80 + 2 * i}")
    a("v_mov_b32 v12, s96")
    a("v_mov_b32 v13, s98")
    a("v_mov_b32 v14, 0")
    a("v_mov_b32 v15, 0")
    for i in range(3):
        a(f"buffer_store_dwordx4 v[{4 + 4 * i}:{7 + 4 * i}], v0, s[{srd}:{srd + 3}], s100 offen offset:{16 * i}")


NST2 = 12
STCLK = [int(x) for x in os.environ.get("STCLK", "0,11").split(",")]


def st2(a, i):
    if STAMP:
        a(f"s_memrealtime s[{72 + 2 * i}:{73 + 2 * i}]")
        if i in STCLK:
            a(f"s_memtime s[{96 + 2 * STCLK.index(i)}:{97 + 2 * STCLK.index(i)}]")


def st2_begin(a):
    if STAMP:
        for i in range(1, NST2):
            a(f"s_mov_b32 s{72 + 2 * i}, 0")
        a("s_memrealtime s[72:73]")
        a("s_memtime s[96:97]")
        a("s_memtime s[98:99]")


STAMPD = bool(int(os.environ.get("STAMPD", "0")))


def st2_end(a, srd, sd=None):
    if not STAMP:
        return
    if STAMPD:
        a("""
        s_memrealtime s[94:95]
        s_waitcnt lgkmcnt(0)
        s_not_b32 s72, s72
        s_cmp_eq_u32 s3, 0
        s_cselect_b32 s100, 1, 11
        v_mov_b32 v4, 0
        """)
        for i in range(NST2):
            a(f"v_writelane_b32 v4, s{72 + 2 * i}, {i}")
        a(f"""
        v_lshlrev_b32 v5, 2, v0
        s_mov_b32 exec_lo, 0x801
        s_cmov_b32 exec_lo, 0xfff
        s_mov_b32 exec_hi, 0
        buffer_atomic_umax v4, v5, s[{sd}:{sd + 3}], 0 offen offset:4 sc1
        """)
        return
    a(f"""
    s_memrealtime s[94:95]
    {"s_memtime s[98:99]" if STCLK[1] == 11 else ""}
    s_lshl_b32 s100, s2, 4
    s_add_u32 s100, s100, s3
    s_lshl_b32 s100, s100, 6
    s_add_u32 s100, s100, {WS_STAMP:#x}
    s_waitcnt lgkmcnt(0)
    v_mov_b32 v0, 0
    """)
    for i in range(NST2):
        a(f"v_mov_b32 v{4 + i}, s{72 + 2 * i}")
    a("v_mov_b32 v16, s96")
    a("v_mov_b32 v17, s98")
    a("v_mov_b32 v18, 0")
    a("v_mov_b32 v19, 0")
    for i in range(4):
        a(f"buffer_store_dwordx4 v[{4 + 4 * i}:{7 + 4 * i}], v0, s[{srd}:{srd + 3}], s100 offen offset:{16 * i}")
```
